```python
import torch

def _softmax(x, axis=-1):
    return torch.softmax(x, dim=axis)
def _gelu(x):
    return torch.nn.functional.gelu(x, approximate="tanh")
def _silu(x):
    return torch.nn.functional.silu(x)
def _sigmoid(x):
    return torch.sigmoid(x)
def _layernorm(x, axis=-1, eps=1e-5):
    m = x.mean(dim=axis, keepdim=True)
    v = x.var(dim=axis, keepdim=True, unbiased=False)
    return (x - m) / torch.sqrt(v + eps)
def _scatter_add(tgt, idx, src, axis=0):
    return tgt.clone().index_add_(axis, idx, src)
def _segment_sum(src, seg, n):
    out = torch.zeros((n,) + src.shape[1:], dtype=src.dtype)
    return out.index_add_(0, seg, src)
def _pad(x, pw):
    flat = tuple(v for pair in reversed(pw) for v in pair)
    return torch.nn.functional.pad(x, flat)

kernel_name = 'standalone__gqa_block_cached__near_ridge'

def setup_inputs():

    _w = (lambda a: (lambda t: t.to(torch.bfloat16) if t.is_floating_point() else t)(torch.as_tensor(a)))
    B, Sq, D = 32, 112, 640
    Hq, Hkv, Sk, Dh = 32, 32, 512, 128
    assert Hq % Hkv == 0, (Hq, Hkv)
    return {
        "x": _w((lambda *s: torch.randn(*s, dtype=torch.bfloat16) * 0.8)(B, Sq, D)),
        "k_cache": _w((lambda *s: torch.randn(*s, dtype=torch.bfloat16) * 0.8)(B, Hkv, Sk, Dh)),
        "v_cache": _w((lambda *s: torch.randn(*s, dtype=torch.bfloat16) * 0.05)(B, Hkv, Sk, Dh)),
        "wq": _w((lambda *s: torch.randn(*s, dtype=torch.bfloat16) * 0.8)(D, Hq * Dh) * (D ** -0.5)),
        "wo": _w((lambda *s: torch.randn(*s, dtype=torch.bfloat16) * 0.05)(Hq * Dh, D) * ((Hq * Dh) ** -0.5)),
    }

def reference(x, k_cache, v_cache, wq, wo):
    B, Sq, D = x.shape
    Hq, Dh = 32, 128
    Hkv = k_cache.shape[1]
    rep = Hq // Hkv
    q = (lambda x, *d: x.permute(*d))((x @ wq).reshape(B, Sq, Hq, Dh), 0, 2, 1, 3)
    k = (lambda x, n, axis: torch.repeat_interleave(x, n, dim=axis))(k_cache, rep, axis=1)
    v = (lambda x, n, axis: torch.repeat_interleave(x, n, dim=axis))(v_cache, rep, axis=1)
    scores = torch.einsum("bhqd,bhkd->bhqk", q, k) * (Dh ** -0.5)
    p = _softmax(scores, axis=-1)
    o = torch.einsum("bhqk,bhkd->bhqd", p, v)
    return (lambda x, *d: x.permute(*d))(o, 0, 2, 1, 3).reshape(B, Sq, Hq * Dh) @ wo
```

```python
class Asm:
    def __init__(self):
        self.L = []
        self.nlab = 0
    def __call__(self, s):
        for line in s.split("\n"):
            line = line.strip()
            if line:
                self.L.append(("" if line.endswith(":") or line.startswith(".") or line.startswith(";") else "    ") + line)
    def label(self, name):
        self.L.append(name + ":")
    def newlab(self, p="L"):
        self.nlab += 1
        return f"{p}_{self.nlab}"
    def text(self):
        return "\n".join(self.L) + "\n"

def v(i, n=1):
    return f"v{i}" if n == 1 else f"v[{i}:{i+n-1}]"
def a(i, n=1):
    return f"a{i}" if n == 1 else f"a[{i}:{i+n-1}]"
def s(i, n=1):
    return f"s{i}" if n == 1 else f"s[{i}:{i+n-1}]"

def kd(name, nvgpr, nsgpr, accum):
    return f""".amdhsa_kernel {name}
  .amdhsa_next_free_vgpr {nvgpr}
  .amdhsa_next_free_sgpr {nsgpr}
  .amdhsa_accum_offset {accum}
  .amdhsa_group_segment_fixed_size 0
  .amdhsa_kernarg_size 64
  .amdhsa_user_sgpr_count 2
  .amdhsa_user_sgpr_kernarg_segment_ptr 1
  .amdhsa_system_sgpr_workgroup_id_x 1
  .amdhsa_float_denorm_mode_32 3
  .amdhsa_float_denorm_mode_16_64 3
.end_amdhsa_kernel
"""
```

```python
import sys, struct
from asmlib import *

C_SCALE = (128 ** -0.5) * 1.4426950408889634
def f32(x): return "0x%08x" % struct.unpack("<I", struct.pack("<f", x))[0]
THR = 8.0 / C_SCALE
WBASE = 0x2000000
WS_BYTES = WBASE + 8 * 128 * 5 * 1024
STG = 65536
QBUF = STG + 65536
OOB = 0x40000000

def sched(A, reads, mfmas, ahead, pre=None):
    issued = 0
    done = 0
    first = True
    for need, m in mfmas:
        lim = min(len(reads), need + ahead, done + 15)
        while issued < lim:
            A(reads[issued]); issued += 1
        if first and pre is not None:
            pre(); first = False
        assert issued >= need
        if need > done:
            A(f"s_waitcnt lgkmcnt({issued - need})")
            done = need
        A(m)
    assert issued == len(reads)

def gen_attn(A):
    A(".text\n.globl attn_kernel\n.p2align 8\n.type attn_kernel,@function\nattn_kernel:")
    A("""
    s_cmp_ge_u32 s2, 256
    s_cbranch_scc1 L_exit
    s_load_dwordx16 s[4:19], s[0:1], 0
    v_lshrrev_b32 v1, 6, v0
    v_and_b32 v2, 63, v0
    v_readfirstlane_b32 s3, v1
    s_and_b32 s44, s2, 7
    s_lshr_b32 s45, s2, 3
    s_lshr_b32 s46, s45, 3
    s_lshl_b32 s44, s44, 2
    s_add_u32 s44, s44, s46
    s_and_b32 s45, s45, 7
    s_and_b32 s47, s3, 3
    s_waitcnt lgkmcnt(0)
    """)
    for (d, src, n) in ((20, 6, 0x8000000), (24, 8, 0x8000000), (28, 4, 4587520), (32, 10, 5242880), (36, 12, 5242880), (40, 18, WS_BYTES)):
        A(f"s_mov_b32 s{d}, s{src}\ns_and_b32 s{d+1}, s{src+1}, 0xffff\ns_mov_b32 s{d+2}, {n}\ns_mov_b32 s{d+3}, 0x20000")
    A("s_cmp_ge_u32 s3, 4\ns_cbranch_scc1 L_proj")
    vKa, vVa, voffK, voffV, voffO, vQa = 4, 12, 16, 20, 21, 22
    vM, vMC, vL0, vL1, vT = 23, 24, 25, 26, 27
    Q, S, P, O, F, DUM = 32, 64, 96, 112, 176, 240
    sItem, sItemN, sIt, sT, sW4096, sO, sC, sThr = 48, 49, 50, 51, 52, 53, 54, 55
    A(f"""
    v_and_b32 v1, 31, v2            ; key32 / q32
    v_lshrrev_b32 v3, 5, v2         ; h
    v_and_b32 v27, 15, v2           ; lane&15
    v_xor_b32 v28, v3, v27
    v_lshlrev_b32 v28, 4, v28
    v_lshl_add_u32 v{vKa}, v1, 8, v28
    """)
    for ks in range(1, 8):
        A(f"v_xor_b32 v{vKa+ks}, {ks<<5}, v{vKa}")
    A(f"""
    v_lshrrev_b32 v28, 4, v2        ; G
    v_lshrrev_b32 v29, 2, v27       ; r
    v_and_b32 v30, 3, v2            ; c
    v_lshl_add_u32 v31, v3, 2, v29  ; 4h + r
    v_lshlrev_b32 v31, 8, v31
    v_and_b32 v32, 1, v28           ; dhalf
    v_lshl_add_u32 v31, v32, 5, v31
    v_lshl_add_u32 v31, v30, 3, v31
    """)
    for dt in range(4):
        A(f"v_xor_b32 v32, {dt}, v29\nv_lshl_add_u32 v{vVa+dt}, v32, 6, v31")
    A(f"""
    s_lshl_b32 s{sW4096}, s47, 12
    v_lshlrev_b32 v31, 8, v28       ; (lane>>4)*256
    v_add_u32 v31, s{sW4096}, v31
    """)
    for p in range(4):
        A(f"v_add_u32 v32, {4*p}, v28\nv_xor_b32 v32, v32, v27\nv_lshl_add_u32 v{voffK+p}, v32, 4, v31")
    A(f"""
    v_lshlrev_b32 v32, 2, v28
    v_xor_b32 v32, v32, v27
    v_lshl_add_u32 v{voffV}, v32, 4, v31
    v_lshrrev_b32 v32, 4, v1
    s_lshl_b32 s{sT}, s47, 1
    v_add_u32 v32, s{sT}, v32        ; qt16
    v_lshl_add_u32 v33, v3, 4, v27
    v_lshlrev_b32 v33, 4, v33
    v_lshl_add_u32 v{voffO}, v32, 10, v33
    v_mov_b32 v33, 0x7ff00000
    v_cmp_lt_u32 vcc, 6, v32
    s_nop 1
    v_cndmask_b32 v{voffO}, v{voffO}, v33, vcc
    s_lshl_b32 s{sT}, s47, 13
    s_add_u32 s{sT}, s{sT}, {QBUF}
    v_lshlrev_b32 v{vQa}, 4, v2
    v_add_u32 v{vQa}, s{sT}, v{vQa}
    s_lshl_b32 s{sItem}, s44, 5
    s_add_u32 s{sItem}, s{sItem}, s45
    s_lshl_b32 s{sItem}, s{sItem}, 17
    s_add_u32 s{sItemN}, s{sItem}, 0x100000
    s_lshl_b32 s{sO}, s44, 7
    s_lshl_b32 s{sT}, s45, 2
    s_add_u32 s{sO}, s{sO}, s{sT}
    s_mul_i32 s{sO}, s{sO}, 7168
    s_mov_b32 s{sIt}, 0
    s_mov_b32 s{sC}, {f32(C_SCALE)}
    s_mov_b32 s{sThr}, {f32(THR)}
    """)
    def issue_tile(n, base):
        sl = n & 3
        A(f"s_add_u32 s{sT}, s{base}, {(n >> 1) * 16384}")
        A(f"s_add_u32 m0, s{sW4096}, {sl * 16384}")
        A("s_nop 0")
        for p in range(4):
            if n & 1:
                A(f"buffer_load_dwordx4 v{voffV}, s[24:27], s{sT} offen offset:{p*1024} nt lds")
            else:
                A(f"buffer_load_dwordx4 v{voffK+p}, s[20:23], s{sT} offen offset:{p*1024} nt lds")
    def read_q():
        for ks in range(8):
            A(f"ds_read_b128 {v(Q+4*ks,4)}, v{vQa} offset:{ks*1024}")
    for n in range(11):
        A("s_barrier")
        if n in (1, 3, 5):
            issue_tile((n - 1) // 2, sItem)
        if n == 5:
            A(f"s_mov_b32 s{sT}, {OOB}")
            for i in range(8):
                A(f"buffer_load_dword v{DUM}, v{voffV}, s[24:27], s{sT} offen")
    read_q()
    A("s_waitcnt vmcnt(16) lgkmcnt(0)")
    A("L_item:")
    for n in range(16):
        sl = n & 3
        A("s_barrier")
        if n % 2 == 0:
            reads = [f"ds_read_b128 {v(F+4*i,4)}, v{vKa+(i&7)} offset:{sl*16384 + (i>>3)*8192}" for i in range(16)]
            mf = []
            for i in range(16):
                kt, ks = i >> 3, i & 7
                c = "0" if ks == 0 else v(S+16*kt,16)
                mf.append((i + 1, f"v_mfma_f32_32x32x16_bf16 {v(S+16*kt,16)}, {v(F+4*i,4)}, {v(Q+4*ks,4)}, {c}"))
            sched(A, reads, mf, 8)
        else:
            def vread(f, jj):
                kk, dt = f >> 2, f & 3
                return f"ds_read_b64_tr_b16 {v(F+4*f+2*jj,2)}, v{vVa+dt} offset:{sl*16384 + kk*4096 + jj*2048}"
            for f in range(7):
                A(vread(f, 0)); A(vread(f, 1))
            A(f"v_max3_f32 v{vT}, v{S}, v{S+1}, v{S+2}")
            A(f"v_max3_f32 v{vT+1}, v{S+16}, v{S+17}, v{S+18}")
            for i in range(3, 15, 2):
                A(f"v_max3_f32 v{vT}, v{vT}, v{S+i}, v{S+i+1}")
                A(f"v_max3_f32 v{vT+1}, v{vT+1}, v{S+16+i}, v{S+16+i+1}")
            A(f"v_max3_f32 v{vT}, v{vT}, v{S+15}, v{S+31}")
            A(f"v_max_f32 v{vT}, v{vT}, v{vT+1}")
            A(f"v_mov_b32 v{vT+1}, v{vT}")
            A("s_nop 1")
            A(f"v_permlane32_swap_b32 v{vT}, v{vT+1}")
            A(f"v_max_f32 v{vT}, v{vT}, v{vT+1}")
            if n == 1:
                A(f"v_mov_b32 v{vM}, v{vT}")
                A(f"v_mul_f32 v{vMC}, s{sC}, v{vT}")
                A(f"v_mov_b32 v{vL0}, 0\nv_mov_b32 v{vL1}, 0")
            else:
                lab = A.newlab("L_nors")
                A(f"v_sub_f32 v{vT+1}, v{vT}, v{vM}")
                A(f"v_cmp_lt_f32 vcc, s{sThr}, v{vT+1}")
                A(f"s_cbranch_vccz {lab}")
                A("s_call_b64 s[60:61], L_rescale")
                A(f"{lab}:")
            for half in range(2):
                for i in range(16):
                    r = S + 16 * half + i
                    A(f"v_fma_f32 v{r}, v{r}, s{sC}, -v{vMC}")
                for i in range(16):
                    r = S + 16 * half + i
                    A(f"v_exp_f32 v{r}, v{r}")
                if half == 0:
                    A("s_waitcnt lgkmcnt(0)")
                    for f in range(7, 14):
                        A(vread(f, 0)); A(vread(f, 1))
                for i in range(0, 16, 2):
                    r = S + 16 * half + i
                    A(f"v_add_f32 v{vL0}, v{vL0}, v{r}")
                    A(f"v_add_f32 v{vL1}, v{vL1}, v{r+1}")
                    A(f"v_cvt_pk_bf16_f32 v{P + 8*half + i//2}, v{r}, v{r+1}")
            A("s_waitcnt lgkmcnt(10)")
            for f in range(14, 16):
                A(vread(f, 0)); A(vread(f, 1))
            for f in range(16):
                kk, dt = f >> 2, f & 3
                if f == 7: A("s_waitcnt lgkmcnt(4)")
                if f == 14:
                    A("s_waitcnt lgkmcnt(0)")
                    if n == 15: read_q()
                c = "0" if (n == 1 and kk == 0) else v(O+16*dt,16)
                A(f"v_mfma_f32_32x32x16_bf16 {v(O+16*dt,16)}, {v(F+4*f,4)}, {v(P+4*kk,4)}, {c}")
        A(f"s_waitcnt vmcnt({12 if n < 2 else 4})")
        n3 = n + 3
        issue_tile(n3 & 15, sItem if n3 < 16 else sItemN)
        if n == 15:
            A(f"""
            v_add_f32 v{vL0}, v{vL0}, v{vL1}
            v_mov_b32 v{vT}, v{vL0}
            s_nop 1
            v_permlane32_swap_b32 v{vL0}, v{vT}
            v_add_f32 v{vL0}, v{vL0}, v{vT}
            v_rcp_f32 v{vT}, v{vL0}
            s_nop 4
            """)
            for dt in range(4):
                for i in range(16):
                    A(f"v_mul_f32 v{O+16*dt+i}, v{O+16*dt+i}, v{vT}")
                for i in range(8):
                    A(f"v_cvt_pk_bf16_f32 v{S+8*dt+i}, v{O+16*dt+2*i}, v{O+16*dt+2*i+1}")
                A(f"s_add_u32 s{sT}, s{sO}, {dt*7168}")
                for p in range(2):
                    A(f"buffer_store_dwordx4 {v(S+8*dt+4*p,4)}, v{voffO}, s[40:43], s{sT} offen offset:{p*512}")
            A(f"""
            s_add_u32 s{sO}, s{sO}, {32*7168}
            s_mov_b32 s{sItem}, s{sItemN}
            s_add_u32 s{sItemN}, s{sItemN}, 0x100000
            s_add_u32 s{sIt}, s{sIt}, 1
            s_cmp_ge_u32 s{sIt}, 3
            s_cselect_b32 s{sItemN}, {OOB}, s{sItemN}
            s_waitcnt lgkmcnt(0)
            s_cmp_lt_u32 s{sIt}, 4
            s_cbranch_scc1 L_item
            s_endpgm
            """)
    A("L_rescale:")
    A(f"""
    v_max_f32 v{vT}, v{vT}, v{vM}
    v_sub_f32 v{vT+1}, v{vM}, v{vT}
    v_mul_f32 v{vT+1}, s{sC}, v{vT+1}
    v_exp_f32 v{vT+1}, v{vT+1}
    v_mov_b32 v{vM}, v{vT}
    v_mul_f32 v{vMC}, s{sC}, v{vT}
    v_mul_f32 v{vL0}, v{vL0}, v{vT+1}
    v_mul_f32 v{vL1}, v{vL1}, v{vT+1}
    """)
    for i in range(64):
        A(f"v_mul_f32 v{O+i}, v{O+i}, v{vT+1}")
    A("s_setpc_b64 s[60:61]")
    A("L_proj:")
    vAa, vBa, voffW, voffX, vQw = 4, 12, 20, 21, 25
    ACC, AF, BF, TMP = 32, 96, 160, 176
    sWq, sX, sRho, sT, sM0 = 48, 49, 50, 51, 52
    A(f"""
    v_and_b32 v1, 31, v2            ; q32
    v_lshrrev_b32 v3, 5, v2         ; h
    v_and_b32 v27, 15, v2
    v_lshrrev_b32 v28, 4, v2        ; G
    v_lshrrev_b32 v29, 2, v27       ; r
    v_and_b32 v30, 3, v2            ; c
    v_lshl_add_u32 v31, v3, 3, v29  ; 8h + r
    v_lshlrev_b32 v31, 8, v31
    v_and_b32 v32, 1, v28
    v_lshl_add_u32 v31, v32, 5, v31
    v_lshl_add_u32 v31, v30, 3, v31
    v_add_u32 v31, {STG}, v31
    """)
    for dt in range(4):
        A(f"v_xor_b32 v32, {dt}, v29\nv_lshl_add_u32 v{vAa+dt}, v32, 6, v31\nv_add_u32 v{vAa+4+dt}, 0x10000, v{vAa+dt}")
    A(f"""
    s_lshl_b32 s{sT}, s47, 5
    v_add_u32 v31, s{sT}, v1         ; row = 32w + q32
    v_bfe_u32 v32, v31, 1, 3        ; (row>>1)&7
    v_xor_b32 v32, v32, v3
    v_lshlrev_b32 v32, 4, v32
    v_lshl_add_u32 v32, v31, 7, v32
    v_add_u32 v{vBa}, {STG + 16384}, v32
    """)
    for ks in range(1, 4):
        A(f"v_xor_b32 v{vBa+ks}, {ks<<5}, v{vBa}")
    for ks in range(4):
        A(f"v_add_u32 v{vBa+4+ks}, 0x10000, v{vBa+ks}")
    A(f"""
    s_lshl_b32 s{sT}, s47, 4
    v_add_u32 v31, s{sT}, v28
    v_lshlrev_b32 v31, 13, v31
    v_lshlrev_b32 v32, 2, v28
    v_xor_b32 v32, v32, v27
    v_lshl_add_u32 v{voffW}, v32, 4, v31
    v_lshrrev_b32 v31, 3, v2        ; i>>3
    s_lshl_b32 s{sT}, s47, 5
    v_add_u32 v31, s{sT}, v31        ; 32w + (i>>3)
    v_and_b32 v33, 7, v2
    s_movk_i32 s{sT}, 1280
    """)
    for p in range(4):
        A(f"""
        v_add_u32 v32, {8*p}, v31       ; row
        v_subrev_u32 v34, 16, v32
        v_cmp_lt_u32 vcc, 111, v32
        s_nop 1
        v_cndmask_b32 v32, v32, v34, vcc
        v_mul_lo_u32 v32, v32, s{sT}
        v_add_u32 v34, {4*(p&1)}, v28
        v_xor_b32 v34, v34, v33
        v_lshl_add_u32 v32, v34, 4, v32
        v_subrev_u32 v{voffX+p}, {p*1024}, v32
        """)
    A(f"""
    s_lshl_b32 s{sT}, s47, 13
    s_add_u32 s{sT}, s{sT}, {QBUF}
    v_lshlrev_b32 v31, 4, v1
    v_lshl_add_u32 v31, v3, 3, v31
    v_add_u32 v{vQw}, s{sT}, v31
    s_lshl_b32 s{sWq}, s45, 8
    s_mul_i32 s{sX}, s44, 143360
    s_lshl_b32 s{sM0}, s47, 12
    s_add_u32 s{sM0}, s{sM0}, {STG}
    s_mov_b32 s{sRho}, 0
    """)
    def issue_chunk(c, wq_add=0):
        st = c % 3
        A(f"s_add_u32 m0, s{sM0}, {st*32768}")
        for p in range(4):
            A(f"s_add_u32 s{sT}, s{sWq}, {c*524288 + p*31744 + wq_add}")
            A(f"buffer_load_dwordx4 v{voffW}, s[32:35], s{sT} offen offset:{p*1024} lds")
        A(f"s_add_u32 m0, s{sM0}, {st*32768 + 16384}")
        A(f"s_add_u32 s{sT}, s{sX}, {c*128}")
        for p in range(4):
            A(f"buffer_load_dwordx4 v{voffX+p}, s[28:31], s{sT} offen offset:{p*1024} lds")
    issue_chunk(0); issue_chunk(1)
    A("L_round:")
    for c in range(10):
        st = c % 3
        A(f"; ---- chunk {c}")
        A(f"s_waitcnt vmcnt({8 if c < 9 else 0})")
        A("s_barrier")
        so = (st & 1) * 32768
        sset = 4 * (st >> 1)
        reads = []; mf = []
        for ks in range(4):
            reads.append(f"ds_read_b128 {v(BF+4*ks,4)}, v{vBa+sset+ks} offset:{so}")
            for dt in range(4):
                f = ks * 4 + dt
                for jj in range(2):
                    reads.append(f"ds_read_b64_tr_b16 {v(AF+4*f+2*jj,2)}, v{vAa+sset+dt} offset:{so + ks*4096 + jj*1024}")
                cc = "0" if (c == 0 and ks == 0) else v(ACC+16*dt,16)
                mf.append((len(reads), f"v_mfma_f32_32x32x16_bf16 {v(ACC+16*dt,16)}, {v(AF+4*f,4)}, {v(BF+4*ks,4)}, {cc}"))
        sched(A, reads, mf, 10, pre=(lambda: issue_chunk(c + 2)) if c + 2 < 10 else None)
    A("s_nop 15")
    for dt in range(4):
        for i in range(4):
            t = TMP + 2 * ((dt * 4 + i) & 7)
            A(f"v_cvt_pk_bf16_f32 v{t}, v{ACC+16*dt+4*i}, v{ACC+16*dt+4*i+1}")
            A(f"v_cvt_pk_bf16_f32 v{t+1}, v{ACC+16*dt+4*i+2}, v{ACC+16*dt+4*i+3}")
            A(f"ds_write_b64 v{vQw}, {v(t,2)} offset:{(2*dt + (i>>1))*1024 + (i&1)*512}")
    A("s_waitcnt lgkmcnt(0)")
    A("s_barrier")
    A(f"s_cmp_eq_u32 s{sRho}, 3\ns_cbranch_scc1 L_last")
    issue_chunk(0, 2048); issue_chunk(1, 2048)
    A(f"s_add_u32 s{sWq}, s{sWq}, 2048")
    A(f"s_cmp_eq_u32 s{sRho}, 0\ns_cbranch_scc1 L_skipb")
    for i in range(5): A("s_barrier")
    A("L_skipb:")
    A(f"s_add_u32 s{sRho}, s{sRho}, 1\ns_branch L_round")
    A("L_last:")
    PITCH = 656
    A(f"""
    s_lshr_b32 s53, s2, 1           ; ks
    s_and_b32 s54, s2, 1            ; half
    s_lshl_b32 s55, s53, 5
    s_lshl_b32 s56, s47, 3
    s_add_u32 s55, s55, s56
    s_mul_i32 s55, s55, 1280
    s_mul_i32 s57, s54, 640
    s_add_u32 s55, s55, s57
    s_mul_i32 s56, s56, {PITCH}
    s_add_u32 s56, s56, {STG}
    v_lshlrev_b32 v31, 4, v2
    s_mov_b32 exec_lo, -1
    s_mov_b32 exec_hi, 0xff
    """)
    for r in range(8):
        A(f"s_add_u32 m0, s56, {r*PITCH}")
        A(f"s_add_u32 s{sT}, s55, {r*1280}")
        A(f"buffer_load_dwordx4 v31, s[36:39], s{sT} offen lds")
    A(f"""
    s_mov_b64 exec, -1
    v_lshrrev_b32 v32, 1, v28
    v_lshlrev_b32 v32, 4, v32
    v_and_b32 v33, 1, v28
    v_lshl_add_u32 v32, v33, 2, v32
    v_add_u32 v32, v32, v29
    v_mul_u32_u24 v32, {PITCH}, v32
    v_lshl_add_u32 v32, v30, 3, v32
    s_mul_i32 s57, s47, 160
    s_add_u32 s57, s57, {STG}
    v_add_u32 v32, s57, v32
    s_lshl_b32 s57, s54, 2
    s_add_u32 s57, s57, s47         ; j'
    s_lshl_b32 s57, s57, 7
    s_add_u32 s57, s57, s53
    s_mul_i32 s57, s57, 5120
    s_add_u32 s57, s57, {WBASE}
    s_add_u32 s58, s57, 4096
    s_waitcnt vmcnt(0)
    s_barrier
    """)
    for t in range(5):
        for jj in range(2):
            A(f"ds_read_b64_tr_b16 {v(AF+4*t+2*jj,2)}, v32 offset:{t*32 + jj*8*PITCH}")
    A("s_waitcnt lgkmcnt(0)")
    for t in range(5):
        A(f"buffer_store_dwordx4 {v(AF+4*t,4)}, v31, s[40:43], s{57 if t < 4 else 58} offen offset:{(t&3)*1024}")
    A("L_exit:\ns_endpgm")

def gen_oproj(A, D=4):
    A(".globl oproj_kernel\n.p2align 8\n.type oproj_kernel,@function\noproj_kernel:")
    A(f"""
    s_cmp_ge_u32 s2, 256
    s_cbranch_scc1 L2_exit
    s_load_dwordx2 s[4:5], s[0:1], 40
    s_load_dwordx2 s[6:7], s[0:1], 56
    v_lshrrev_b32 v1, 6, v0
    v_and_b32 v2, 63, v0
    v_readfirstlane_b32 s3, v1
    s_and_b32 s20, s2, 7
    s_lshr_b32 s21, s2, 3
    s_lshr_b32 s22, s21, 3
    s_lshl_b32 s20, s20, 2
    s_add_u32 s20, s20, s22         ; b
    s_and_b32 s21, s21, 7           ; j
    v_lshlrev_b32 v3, 4, v2
    v_add_u32 v4, 4096, v3
    s_lshl_b32 s22, s3, 5
    s_lshl_b32 s23, s20, 7
    s_add_u32 s23, s23, s22
    s_mul_i32 s23, s23, 7168        ; sO
    s_lshl_b32 s24, s21, 7
    s_add_u32 s24, s24, s22
    s_mul_i32 s24, s24, 5120
    s_add_u32 s24, s24, {WBASE}     ; sW
    s_waitcnt lgkmcnt(0)
    s_mov_b32 s8, s6
    s_and_b32 s9, s7, 0xffff
    s_mov_b32 s10, {WS_BYTES}
    s_mov_b32 s11, 0x20000
    s_mov_b32 s12, s4
    s_and_b32 s13, s5, 0xffff
    s_mov_b32 s14, 4587520
    s_mov_b32 s15, 0x20000
    s_mov_b32 s25, 0
    """)
    ST = 16
    def issue(d):
        base = ST + 48 * d
        for q in range(7):
            A(f"buffer_load_dwordx4 {v(base+4*q,4)}, v{3 if q < 4 else 4}, s[8:11], s23 offen offset:{(q&3)*1024}")
        for t in range(5):
            A(f"buffer_load_dwordx4 {v(base+28+4*t,4)}, v{3 if t < 4 else 4}, s[8:11], s24 offen offset:{(t&3)*1024}")
        A(f"""
        s_add_u32 s23, s23, 7168
        s_add_u32 s24, s24, 5120
        s_add_u32 s25, s25, 1
        s_cmp_ge_u32 s25, 32
        s_cselect_b32 s23, {OOB}, s23
        s_cselect_b32 s24, {OOB}, s24
        """)
    for d in range(D - 1):
        issue(d)
    for i in range(140):
        A(f"v_accvgpr_write_b32 a{i}, 0")
    A("s_mov_b32 s26, 0")
    A("L2_loop:")
    for d in range(D):
        issue((d + D - 1) % D)
        A(f"s_waitcnt vmcnt({12*(D-1)})")
        base = ST + 48 * d
        for t in range(5):
            for q in range(7):
                ac = a(4*(t*7+q), 4)
                A(f"v_mfma_f32_16x16x32_bf16 {ac}, {v(base+28+4*t,4)}, {v(base+4*q,4)}, {ac}")
    A(f"s_add_u32 s26, s26, {D}\ns_cmp_lt_u32 s26, 32\ns_cbranch_scc1 L2_loop")
    A(f"""
    s_mul_i32 s22, s3, 35840
    v_add_u32 v5, s22, v3
    s_nop 7
    """)
    for t in range(35):
        A(f"ds_write_b128 v5, {a(4*t,4)} offset:{t*1024}")
    A(f"""
    s_mul_i32 s22, s20, 143360
    s_mul_i32 s23, s21, 160
    s_add_u32 s22, s22, s23
    s_movk_i32 s24, 6554
    s_movk_i32 s25, 1280
    s_waitcnt lgkmcnt(0)
    s_barrier
    """)
    for m in range(5):
        R = 16 + 40 * m
        A(f"""
        v_add_u32 v6, {256*m}, v0       ; e
        v_mul_lo_u32 v7, v6, s24
        v_lshrrev_b32 v7, 16, v7        ; q
        v_mul_u32_u24 v8, 10, v7
        v_sub_u32 v8, v6, v8            ; n8
        v_lshrrev_b32 v9, 1, v8         ; t
        v_mul_u32_u24 v9, 7, v9
        v_lshrrev_b32 v10, 4, v7        ; qt
        v_add_u32 v9, v9, v10
        v_lshlrev_b32 v9, 10, v9
        v_and_b32 v10, 1, v8
        v_lshl_add_u32 v9, v10, 9, v9
        v_and_b32 v10, 15, v7
        v_lshl_add_u32 v9, v10, 4, v9
        v_add_u32 v10, 71680, v9
        v_mul_lo_u32 v{R+32}, v7, s25
        v_lshl_add_u32 v{R+32}, v8, 4, v{R+32}
        """)
        if m == 4:
            A(f"v_mov_b32 v11, 0x7ff00000\nv_cmp_lt_u32 vcc, 1119, v6\ns_nop 1\nv_cndmask_b32 v{R+32}, v{R+32}, v11, vcc")
        if m: A("s_waitcnt lgkmcnt(7)")
        for w in range(4):
            for g in range(2):
                A(f"ds_read_b128 {v(R+8*w+4*g,4)}, v{9 if w < 2 else 10} offset:{(w&1)*35840 + g*256}")
    A("s_waitcnt lgkmcnt(0)")
    for m in range(5):
        R = 16 + 40 * m
        for i in range(8):
            A(f"v_add_f32 v{R+i}, v{R+i}, v{R+8+i}")
            A(f"v_add_f32 v{R+16+i}, v{R+16+i}, v{R+24+i}")
        for i in range(8):
            A(f"v_add_f32 v{R+i}, v{R+i}, v{R+16+i}")
        for i in range(4):
            A(f"v_cvt_pk_bf16_f32 v{R+36+i}, v{R+2*i}, v{R+2*i+1}")
        A(f"buffer_store_dwordx4 {v(R+36,4)}, v{R+32}, s[12:15], s22 offen")
    A("L2_exit:\ns_endpgm")

def main(out):
    A = Asm()
    A("; @launch kernel=attn_kernel grid=(256,1,1) block=(512,1,1) lds=163840")
    A("; @launch kernel=oproj_kernel grid=(256,1,1) block=(256,1,1) lds=147456")
    A('.amdgcn_target "amdgcn-amd-amdhsa--gfx950"')
    gen_attn(A)
    gen_oproj(A)
    A('.section .rodata,"a"\n.p2align 6')
    txt = A.text() + kd("attn_kernel", 248, 72, 248) + ".p2align 6\n" + kd("oproj_kernel", 256 + 140, 40, 256)
    open(out, "w").write(txt)

if __name__ == "__main__":
    for e in range(1280): assert (e * 6554) >> 16 == e // 10
    main(sys.argv[1] if len(sys.argv) > 1 else "v1.s")
```
